```python
import torch

def _softmax(x, axis=-1):
    return torch.softmax(x, dim=axis)
def _gelu(x):
    return torch.nn.functional.gelu(x, approximate="tanh")
def _silu(x):
    return torch.nn.functional.silu(x)
def _sigmoid(x):
    return torch.sigmoid(x)
def _layernorm(x, axis=-1, eps=1e-5):
    m = x.mean(dim=axis, keepdim=True)
    v = x.var(dim=axis, keepdim=True, unbiased=False)
    return (x - m) / torch.sqrt(v + eps)
def _scatter_add(tgt, idx, src, axis=0):
    return tgt.clone().index_add_(axis, idx, src)
def _segment_sum(src, seg, n):
    out = torch.zeros((n,) + src.shape[1:], dtype=src.dtype)
    return out.index_add_(0, seg, src)
def _pad(x, pw):
    flat = tuple(v for pair in reversed(pw) for v in pair)
    return torch.nn.functional.pad(x, flat)

kernel_name = 'standalone__kv_cache_quant_int4_int2_kv_with_per_channel_or_per_token_scales__prompt'

def setup_inputs():

    _w = (lambda a: (lambda t: t.to(torch.bfloat16) if t.is_floating_point() else t)(torch.as_tensor(a)))
    B = 1
    Sq = 2048
    Skv = 2048
    Hq = 32
    Hkv = 4
    Dh = 128
    bits = 4
    G = 128
    if G <= 0 or G >= Skv:
        G = max(1, Skv // 2)
    Skv = (Skv // G) * G
    ngk = Skv // G
    qmax = (1 << bits) - 1
    return {
        "q": _w((lambda *s: torch.randn(*s, dtype=torch.bfloat16) * 1.6)(B, Hq, Sq, Dh)),
        "qk": _w(torch.randint(0, qmax + 1, (B, Hkv, Skv, Dh)).to(torch.int32)),
        "qv": _w(torch.randint(0, qmax + 1, (B, Hkv, Skv, Dh)).to(torch.int32)),
        "k_scales": _w(torch.abs((lambda *s: torch.randn(*s, dtype=torch.bfloat16) * 1.6)(B, Hkv, ngk, Dh)) * 0.05 + 0.02),
        "k_zeros": _w((lambda *s: torch.randn(*s, dtype=torch.bfloat16) * 1.6)(B, Hkv, ngk, Dh) + float(qmax) / 2.0),
        "v_scales": _w(torch.abs((lambda *s: torch.randn(*s, dtype=torch.bfloat16) * 0.05)(B, Hkv, Skv, 1)) * 0.05 + 0.02),
        "v_zeros": _w((lambda *s: torch.randn(*s, dtype=torch.bfloat16) * 0.05)(B, Hkv, Skv, 1) + float(qmax) / 2.0),
    }

def reference(q, qk, qv, k_scales, k_zeros, v_scales, v_zeros):
    B, Hq, Sq, Dh = q.shape
    Hkv, Skv = qk.shape[1], qk.shape[2]
    ngk = k_scales.shape[2]
    G = Skv // ngk
    ks = (lambda x, n, axis: torch.repeat_interleave(x, n, dim=axis))(k_scales, G, axis=2)
    kz = (lambda x, n, axis: torch.repeat_interleave(x, n, dim=axis))(k_zeros, G, axis=2)
    k = ((lambda x, dt: x.to(dt))(qk, q.dtype) - kz) * ks
    v = ((lambda x, dt: x.to(dt))(qv, q.dtype) - v_zeros) * v_scales
    rep = Hq // Hkv
    if rep > 1:
        k = (lambda x, n, axis: torch.repeat_interleave(x, n, dim=axis))(k, rep, axis=1)
        v = (lambda x, n, axis: torch.repeat_interleave(x, n, dim=axis))(v, rep, axis=1)
    scale = float(Dh) ** -0.5
    logits = torch.einsum("bhqd,bhkd->bhqk", q, k) * scale
    p = _softmax(logits, axis=-1)
    o = torch.einsum("bhqk,bhkd->bhqd", p, v)
    return o
```

```python
import re

def regs_of(tok):
    tok = tok.strip()
    tok = tok.lstrip('-').replace('abs(', '').replace(')', '').replace('|', '')
    m = re.fullmatch(r'([vas])\[(\d+):(\d+)\]', tok)
    if m:
        return {(m.group(1), r) for r in range(int(m.group(2)), int(m.group(3)) + 1)}
    m = re.fullmatch(r'([vas])(\d+)', tok)
    if m:
        return {(m.group(1), int(m.group(2)))}
    if tok in ('vcc', 'vcc_lo', 'vcc_hi'):
        return {('s', 'vcc')}
    if tok == 'm0':
        return {('s', 'm0')}
    if tok == 'exec':
        return {('s', 'exec')}
    return set()

TRANS = ('v_exp_f32', 'v_log_f32', 'v_rcp_f32', 'v_rsq_f32', 'v_sqrt_f32', 'v_sin_f32', 'v_cos_f32')

class I:
    def __init__(self, text):
        self.text = text
        t = text.split(';')[0].strip()
        self.op = t.split()[0] if t else ''
        rest = t[len(self.op):].strip()
        ops = [x.strip() for x in rest.split(',')] if rest else []
        if ops:
            last = ops[-1].split()
            self.mods = ' '.join(last[1:])
            ops[-1] = last[0] if last else ''
        else:
            self.mods = ''
        self.ops = ops
        op = self.op
        self.is_label = t.endswith(':') or t.startswith('.') or not t
        self.mfma = op.startswith('v_mfma')
        self.valu = op.startswith('v_') and not self.mfma
        self.trans = any(op.startswith(x) for x in TRANS)
        self.ds = op.startswith('ds_')
        self.vmem = op.startswith('buffer_') or op.startswith('global_')
        self.salu = op.startswith('s_')
        self.w = set(); self.r = set(); self.rc = set(); self.rab = set()
        R = [regs_of(o) for o in ops]
        if self.mfma:
            self.w = R[0]; self.rab = R[1] | R[2]; self.rc = R[3]; self.r = self.rab | self.rc
            self.passes = 4 if '16x16' in op else 8
        elif self.valu:
            self.w = set(R[0]) if R else set()
            for x in R[1:]: self.r |= x
            if 'permlane' in op and 'swap' in op:
                self.w |= R[1]; self.r |= R[0]
            if op.startswith('v_fmac') or op.startswith('v_dot2c'):
                self.r |= R[0]
            if '_co_' in op:
                self.w |= R[1]
        elif self.ds:
            if 'read' in op or 'permute' in op or 'swizzle' in op:
                self.w = R[0]
                for x in R[1:]: self.r |= x
            else:
                for x in R: self.r |= x
        elif self.vmem:
            lds = ' lds' in (' ' + self.mods)
            self.lds = lds
            if 'load' in op and not lds:
                self.w = R[0]
                for x in R[1:]: self.r |= x
            else:
                for x in R: self.r |= x
            if lds: self.r |= {('s', 'm0')}
        elif self.salu:
            if op.startswith('s_cmp') or op in ('s_waitcnt', 's_nop', 's_barrier', 's_endpgm', 's_sleep', 's_setprio') or op.startswith('s_cbranch') or op == 's_branch':
                for x in R: self.r |= x
            else:
                self.w = set(R[0]) if R else set()
                for x in R[1:]: self.r |= x
        self.states = 1
        if op == 's_nop':
            self.states = int(ops[0], 0) + 1

def check(lines, name=''):
    ins = [I(l) for l in lines]
    ins = [i for i in ins if not i.is_label]
    errs = []
    for n, c in enumerate(ins):
        dist = 0
        for m in range(n - 1, max(-1, n - 40), -1):
            p = ins[m]
            need = 0
            vw = {x for x in p.w if x[0] in 'va'}
            sw = {x for x in p.w if x[0] == 's'}
            if p.mfma:
                k = {4: 0, 8: 1}[p.passes]
                if c.mfma:
                    if vw & c.rab: need = max(need, (8, 12)[k])
                    if vw & c.rc and not (vw == c.rc and c.passes == p.passes): need = max(need, (6, 10)[k])
                elif c.valu or c.ds or c.vmem:
                    if vw & (c.r | c.w): need = max(need, (8, 12)[k])
                if c.valu and (p.rc & c.w): need = max(need, (3, 7)[k])
            if p.valu:
                if c.mfma and vw & c.r: need = max(need, 2)
                if p.trans and c.valu and not c.trans and vw & c.r: need = max(need, 1)
                if p.trans and c.trans and vw & c.r: need = max(need, 1)
                if c.valu and 'permlane' in c.op and vw & c.r: need = max(need, 2)
                if c.valu and ('dpp' in c.op or 'row_' in c.mods or 'quad_perm' in c.mods) and vw & c.r: need = max(need, 2)
                if c.valu and c.op.startswith('v_read') and vw & c.r: need = max(need, 1)
                if sw and c.vmem and sw & c.r: need = max(need, 5)
                if sw and c.valu and sw & c.r: need = max(need, 2)
            if p.salu and ('s', 'm0') in p.w and c.vmem and getattr(c, 'lds', False): need = max(need, 1)
            if p.vmem and 'store' in p.op and ('x4' in p.op or 'x3' in p.op) and c.valu:
                data = regs_of(p.ops[0]) if p.op.startswith('buffer') else regs_of(p.ops[1])
                if data & c.w: need = max(need, 2)
            if need > dist:
                errs.append(f'{name}: need {need} have {dist}: [{p.text.strip()}] -> [{c.text.strip()}]')
            dist += p.states
            if dist > 24: break
    return errs
```

```python
import sys, math, struct
import hz

KN = 'standalone__kv_cache_quant_int4_int2_kv_with_per_channel_or_per_token_scales__prompt'

def f2u(x):
    return struct.unpack('<I', struct.pack('<f', x))[0]

CSCALE = (128 ** -0.5) * math.log2(math.e)

class Opt:
    def __init__(self, **kw):
        self.summode = 'mfma'
        self.PF = 3
        self.NC = 8
        self.G0 = 5
        self.stamp = 0
        self.force_slow = 0
        self.abl = ''
        self.__dict__.update(kw)

def vr(b, n=1):
    return f'v{b}' if n == 1 else f'v[{b}:{b+n-1}]'
def ar(b, n=1):
    return f'a{b}' if n == 1 else f'a[{b}:{b+n-1}]'

def gen_prep(o):
    L = []; A = L.append
    A('prep_kernel:')
    A('s_cmp_ge_u32 s2, 256')
    A('s_cbranch_scc1 Lprep_end')
    A('s_load_dwordx4 s[4:7], s[0:1], 8')
    A('s_load_dwordx4 s[8:11], s[0:1], 24')
    A('s_load_dwordx4 s[12:15], s[0:1], 40')
    A('s_load_dwordx2 s[16:17], s[0:1], 72')
    A('v_lshrrev_b32 v1, 6, v0')
    A('v_and_b32 v2, 63, v0')
    A('v_readfirstlane_b32 s3, v1')
    A('s_lshr_b32 s18, s2, 6')
    A('s_and_b32 s19, s2, 63')
    A('s_mov_b32 s22, 0x400000')
    A('s_mov_b32 s23, 0x20000')
    A('s_mov_b32 s26, 0x4000')
    A('s_mov_b32 s27, 0x20000')
    A('s_mov_b32 s30, 0x4000')
    A('s_mov_b32 s31, 0x20000')
    A('s_mov_b32 s38, 0x400000')
    A('s_mov_b32 s39, 0x20000')
    A('s_lshl_b32 s40, s2, 14')
    A('s_waitcnt lgkmcnt(0)')
    A('s_mov_b32 s36, s16')
    A('s_mov_b32 s37, s17')
    A('s_cmp_ge_u32 s3, 2')
    A('s_cbranch_scc1 Lprep_k')
    A('s_mov_b32 s20, s6'); A('s_mov_b32 s21, s7')
    A('s_mov_b32 s24, s12'); A('s_mov_b32 s25, s13')
    A('s_mov_b32 s28, s14'); A('s_mov_b32 s29, s15')
    A('v_lshrrev_b32 v3, 5, v0')
    A('v_and_b32 v4, 31, v0')
    A('v_lshlrev_b32 v5, 11, v3')
    A('v_lshl_add_u32 v5, v4, 4, v5')
    A('s_add_u32 s41, s40, 8192')
    for e in range(8):
        A(f'buffer_load_dwordx4 {vr(16+4*e,4)}, v5, s[20:23], {"s40" if e<4 else "s41"} offen offset:{(e%4)*512}')
    A('v_lshlrev_b32 v6, 3, v3')
    A('s_lshl_b32 s42, s2, 6')
    A('buffer_load_dwordx2 v[8:9], v6, s[24:27], s42 offen')
    A('buffer_load_dwordx2 v[10:11], v6, s[24:27], s42 offen offset:32')
    A('buffer_load_dwordx2 v[12:13], v6, s[28:31], s42 offen')
    A('buffer_load_dwordx2 v[14:15], v6, s[28:31], s42 offen offset:32')
    A('v_lshrrev_b32 v6, 3, v4'); A('v_lshlrev_b32 v6, 11, v6')
    A('v_and_b32 v7, 1, v4'); A('v_lshl_add_u32 v6, v7, 10, v6')
    A('v_bfe_u32 v7, v4, 1, 2'); A('v_lshl_add_u32 v6, v7, 6, v6')
    A('v_lshl_add_u32 v6, v3, 8, v6')
    A('s_add_u32 s43, s19, 2'); A('s_and_b32 s43, s43, 63'); A('s_lshl_b32 s43, s43, 14')
    A('s_lshl_b32 s44, s18, 20'); A('s_add_u32 s43, s43, s44')
    A('s_waitcnt vmcnt(0)')
    for e in range(8):
        src = 8 + e // 2
        if e % 2 == 0:
            A(f'v_lshlrev_b32 v{48+e}, 16, v{src}'); A(f'v_lshlrev_b32 v{56+e}, 16, v{src+4}')
        else:
            A(f'v_and_b32 v{48+e}, 0xffff0000, v{src}'); A(f'v_and_b32 v{56+e}, 0xffff0000, v{src+4}')
    for e in range(8):
        for r in range(4):
            A(f'v_cvt_f32_i32 v{16+4*e+r}, v{16+4*e+r}')
        for r in range(4):
            A(f'v_sub_f32 v{16+4*e+r}, v{16+4*e+r}, v{56+e}')
        for r in range(4):
            A(f'v_mul_f32 v{16+4*e+r}, v{16+4*e+r}, v{48+e}')
    for r in range(4):
        for p in range(4):
            A(f'v_cvt_pk_bf16_f32 v{64+4*r+p}, v{16+8*p+r}, v{20+8*p+r}')
        A(f'buffer_store_dwordx4 {vr(64+4*r,4)}, v6, s[36:39], s43 offen offset:{16*r}')
    A('s_endpgm')
    A('Lprep_k:')
    A('s_mov_b32 s20, s4'); A('s_mov_b32 s21, s5')
    A('s_mov_b32 s24, s8'); A('s_mov_b32 s25, s9')
    A('s_mov_b32 s28, s10'); A('s_mov_b32 s29, s11')
    A('s_sub_u32 s3, s3, 2')
    A('v_and_b32 v3, 15, v2')
    A('v_lshrrev_b32 v4, 4, v2')
    A('v_lshlrev_b32 v5, 9, v3')
    A('v_lshl_add_u32 v5, v4, 5, v5')
    A('s_lshl_b32 s41, s3, 13'); A('s_add_u32 s41, s41, s40')
    for ds in range(4):
        for u in range(2):
            A(f'buffer_load_dwordx4 {vr(16+8*ds+4*u,4)}, v5, s[20:23], s41 offen offset:{ds*128+16*u}')
    A('v_lshlrev_b32 v6, 4, v4')
    A('s_lshr_b32 s42, s2, 2'); A('s_lshl_b32 s42, s42, 8')
    for ds in range(4):
        A(f'buffer_load_dwordx4 {vr(48+4*ds,4)}, v6, s[24:27], s42 offen offset:{ds*64}')
        A(f'buffer_load_dwordx4 {vr(64+4*ds,4)}, v6, s[28:31], s42 offen offset:{ds*64}')
    A('v_lshlrev_b32 v6, 4, v2')
    A('s_lshl_b32 s43, s3, 12'); A('s_add_u32 s43, s43, s40'); A('s_add_u32 s43, s43, 8192')
    A(f's_mov_b32 s44, {f2u(CSCALE):#x}')
    A('s_waitcnt vmcnt(0)')
    for ds in range(4):
        for e in range(8):
            x = 16 + 8 * ds + e
            src = 4 * ds + e // 2
            if e % 2 == 0:
                A(f'v_lshlrev_b32 v8, 16, v{48+src}'); A(f'v_lshlrev_b32 v9, 16, v{64+src}')
            else:
                A(f'v_and_b32 v8, 0xffff0000, v{48+src}'); A(f'v_and_b32 v9, 0xffff0000, v{64+src}')
            A(f'v_cvt_f32_i32 v{x}, v{x}')
            A('v_mul_f32 v8, s44, v8')
            A(f'v_sub_f32 v{x}, v{x}, v9')
            A(f'v_mul_f32 v{x}, v{x}, v8')
        for p in range(4):
            A(f'v_cvt_pk_bf16_f32 v{80+4*ds+p}, v{16+8*ds+2*p}, v{17+8*ds+2*p}')
        A(f'buffer_store_dwordx4 {vr(80+4*ds,4)}, v6, s[36:39], s43 offen offset:{ds*1024}')
    A('Lprep_end:')
    A('s_endpgm')
    return L

S0 = 16; O0 = 80; L0 = 208; ONES = 224; T0 = 228
Q0 = 0; F0 = 64
MF = 'v_mfma_f32_16x16x32_bf16'
sWAVE, sCNT, sOFF, sBASE, sTMP = 's16', 's17', 's18', 's19', 's20'
s4K, s8K, s12K, s16K, s32K, sLMASK, sGMASK, sNREC = 's21', 's22', 's23', 's24', 's25', 's26', 's27', 's28'

def Sreg(par, qb): return S0 + 32 * par + 8 * qb
def Oreg(qb, db): return O0 + (qb * 8 + db) * 4
def Freg(s): return F0 + 4 * (s % 8)

def qk_mfma(par, f, qb):
    kb, ds = f // 4, f % 4
    d = vr(Sreg(par, qb) + 4 * kb, 4)
    return f'{MF} {d}, {ar(Freg(f),4)}, {ar(Q0+(qb*4+ds)*4,4)}, {"0" if ds == 0 else d}'
def pv_mfma(par, db, qb):
    d = vr(Oreg(qb, db), 4)
    return f'{MF} {d}, {ar(Freg(db),4)}, {vr(Sreg(par,qb),4)}, {d}'
def sum_mfma(par, qb):
    d = vr(L0 + 4 * qb, 4)
    return f'{MF} {d}, {vr(ONES,4)}, {vr(Sreg(par,qb),4)}, {d}'

def step(o, isB, do_qk=True, do_pv=True):
    pn = 1 if isB else 0
    pc = 1 - pn
    mf = o.summode == 'mfma'
    ng = 17 if mf else 16
    M = [[None] * 4 for _ in range(ng)]
    sc = [[[] for _ in range(4)] for _ in range(ng)]
    ve = [[[] for _ in range(4)] for _ in range(ng)]
    for g in range(8):
        for q in range(4):
            M[g][q] = qk_mfma(pn, g, q) if do_qk else None
            M[8 + g][q] = pv_mfma(pc, g, q) if do_pv else None
    if mf:
        for q in range(4):
            M[16][q] = sum_mfma(pc, q) if do_pv else None
    koff = 24576 if isB else 8192
    voff = 0 if isB else 16384
    koff_next = 8192 if isB else 24576
    for g in range(16):
        s = g + o.PF
        if s < 8: off, need = koff + s * 1024, do_qk
        elif s < 16: off, need = voff + (s - 8) * 1024, do_pv
        else: off, need = koff_next + (s - 16) * 1024, do_qk
        if need and 'd' not in o.abl:
            ve[g][1].append(f'ds_read_b128 {ar(Freg(s),4)}, v3 offset:{off}')
        gw = g if not (mf and g == 15) else 16
        sc[gw][3].append(f's_waitcnt lgkmcnt({o.PF-1})')
    for pr in range(16):
        kb, qb, hh = pr // 8, (pr % 8) // 2, pr % 2
        ge = o.G0 + pr
        par, need = (pn, do_qk) if ge < 16 else (pc, do_pv)
        r = Sreg(par, qb) + 4 * kb + 2 * hh
        if need:
            if 'e' not in o.abl:
                ve[ge % 16][0].append(f'v_exp_f32 v{r}, v{r}')
                ve[ge % 16][2].append(f'v_exp_f32 v{r+1}, v{r+1}')
            if not mf:
                ve[ge % 16][3].append(f'v_add_f32 v{L0+4*qb}, v{L0+4*qb}, v{r}')
                ve[ge % 16][3].append(f'v_add_f32 v{L0+4*qb+1}, v{L0+4*qb+1}, v{r+1}')
        gc = ge + 1
        par, need = (pn, do_qk) if gc < 16 else (pc, do_pv)
        r = Sreg(par, qb) + 4 * kb + 2 * hh
        if need and 'c' not in o.abl:
            ve[gc % 16][1].append(f'v_cvt_pk_bf16_f32 v{Sreg(par,qb)+2*kb+hh}, v{r}, v{r+1}')
    full = do_qk and do_pv
    if full:
        sc[8][0].append(f's_add_u32 {sTMP}, m0, {s16K}')
        if o.NC == 8:
            sc[8][1].append(f's_and_b32 m0, {sTMP}, {sLMASK}')
        else:
            sc[8][1].append(f's_cmp_ge_u32 {sTMP}, {sLMASK}')
            sc[8][2].append(f's_cselect_b32 s29, {sLMASK}, 0')
            sc[9][0].append(f's_sub_u32 m0, {sTMP}, s29')
        sc[9][1].append(f's_add_u32 {sOFF}, {sOFF}, {s16K}')
        sc[9][2].append(f's_and_b32 {sOFF}, {sOFF}, {sGMASK}')
        if 'm' not in o.abl:
            pos = [(10, 3), (12, 3), (14, 3), (16, 1)] if mf else [(10, 3), (11, 3), (13, 3), (14, 3)]
            for k, (g, q) in enumerate(pos):
                ve[g][q].insert(0, f'buffer_load_dwordx4 v4, s[8:11], {sOFF} offen offset:{k*1024} lds')
        if isB:
            gb = 7 - o.PF
            sc[0][0].append(f's_add_u32 {sBASE}, {sBASE}, {s32K}')
            if o.NC == 8:
                sc[0][1].append(f's_and_b32 {sBASE}, {sBASE}, {sLMASK}')
            else:
                sc[0][1].append(f's_cmp_ge_u32 {sBASE}, {sLMASK}')
                sc[0][2].append(f's_cselect_b32 {sBASE}, 0, {sBASE}')
            ve[gb][3].append(f'v_add_u32 v3, {sBASE}, v2')
            sc[gb][2].append(f's_waitcnt vmcnt({4*(o.NC-5)})')
            if 'b' not in o.abl:
                sc[gb + 1][0].append('s_barrier')
            sc[ng - 1][0].append(f's_add_u32 {sCNT}, {sCNT}, 1')
            sc[ng - 1][2].append(f's_cmp_lt_u32 {sCNT}, 32')
        else:
            sc[0][0].append(f's_cmp_lt_u32 {sCNT}, {(68-o.NC)//2}')
            sc[0][1].append(f's_cselect_b32 s10, {sNREC}, 0')
    return M, sc, ve

def flatten(M, sc, ve):
    L = []
    for g in range(len(M)):
        for q in range(4):
            if M[g][q]: L.append(M[g][q])
            L += sc[g][q]
            L += ve[g][q]
    return L

def gen_main(o):
    mf = o.summode == 'mfma'
    NC = o.NC
    P = []; A = P.append
    A('attn_kernel:')
    A('s_cmp_ge_u32 s2, 256')
    A('s_cbranch_scc1 Lend')
    if o.stamp:
        A('s_memtime s[40:41]'); A('s_memrealtime s[42:43]')
    A('s_load_dwordx2 s[4:5], s[0:1], 0')
    A('s_load_dwordx2 s[8:9], s[0:1], 72')
    A('s_load_dwordx2 s[12:13], s[0:1], 56')
    A('v_lshrrev_b32 v5, 6, v0')
    A('v_and_b32 v2, 63, v0')
    A(f'v_readfirstlane_b32 {sWAVE}, v5')
    A('s_and_b32 s3, s2, 7'); A('s_lshl_b32 s3, s3, 5'); A('s_lshr_b32 s29, s2, 3'); A('s_add_u32 s3, s3, s29')
    A('v_and_b32 v6, 15, v2'); A('v_lshrrev_b32 v7, 4, v2')
    A('v_lshlrev_b32 v1, 8, v6'); A('v_lshl_add_u32 v1, v7, 4, v1'); A('v_lshl_add_u32 v1, v5, 14, v1')
    A('v_lshlrev_b32 v2, 4, v2')
    A('v_lshl_add_u32 v4, v5, 12, v2')
    A('v_mov_b32 v3, v2')
    A(f's_movk_i32 {s4K}, 0x1000'); A(f's_movk_i32 {s8K}, 0x2000'); A(f's_movk_i32 {s12K}, 0x3000'); A(f's_movk_i32 {s16K}, 0x4000')
    A(f's_mov_b32 {s32K}, 0x8000')
    A(f's_mov_b32 {sLMASK}, {0x1ffff if NC == 8 else NC*16384:#x}')
    A(f's_mov_b32 {sGMASK}, 0xfffff'); A(f's_mov_b32 {sNREC}, 0x100000')
    A('s_mov_b32 s6, 0x10000'); A('s_mov_b32 s7, 0x20000')
    A('s_mov_b32 s10, 0x100000'); A('s_mov_b32 s11, 0x20000')
    A('s_mov_b32 s14, 0x10000'); A('s_mov_b32 s15, 0x20000')
    A('s_lshl_b32 s30, s3, 16')
    A('s_lshr_b32 s31, s3, 6'); A('s_lshl_b32 s31, s31, 20')
    A(f's_lshl_b32 s32, {sWAVE}, 11'); A('s_add_u32 s32, s32, 0x2000')
    A('s_waitcnt lgkmcnt(0)')
    if o.stamp:
        A('s_mov_b32 s48, s8'); A('s_mov_b32 s49, s9')
    A('s_add_u32 s8, s8, s31'); A('s_addc_u32 s9, s9, 0')
    A('s_add_u32 s4, s4, s30'); A('s_addc_u32 s5, s5, 0')
    A('s_add_u32 s12, s12, s30'); A('s_addc_u32 s13, s13, 0')
    A('s_mov_b32 m0, s32')
    A('s_add_u32 s33, s32, 0x4000')
    A('buffer_load_dwordx4 v2, s[8:11], s32 offen lds')
    A('buffer_load_dwordx4 v2, s[8:11], s32 offen offset:1024 lds')
    so = ['0', s4K, s8K, s12K]
    for qb in range(4):
        for ds in range(4):
            A(f'buffer_load_dwordx4 {ar(Q0+(qb*4+ds)*4,4)}, v1, s[4:7], {so[qb]} offen offset:{ds*64}')
    A('s_mov_b32 m0, s33')
    A(f's_lshl_b32 s34, {sWAVE}, 12')
    A('buffer_load_dwordx4 v2, s[8:11], s33 offen lds')
    A('buffer_load_dwordx4 v2, s[8:11], s33 offen offset:1024 lds')
    for c in range(2, NC - 1):
        A(f's_add_u32 m0, s34, {c*16384}')
        A(f's_mov_b32 {sOFF}, {c*16384}')
        for k in range(4):
            A(f'buffer_load_dwordx4 v4, s[8:11], {sOFF} offen offset:{k*1024} lds')
    for r in range(O0, L0 + 16):
        A(f'v_mov_b32 v{r}, 0')
    if mf:
        A('v_and_b32 v6, 3, v0')
        A('v_mov_b32 v7, 0x3f803f80')
        A('v_cmp_eq_u32 vcc, 0, v6')
        A('s_nop 1')
        for r in range(4):
            A(f'v_cndmask_b32 v{ONES+r}, 0, v7, vcc')
    A(f's_mov_b32 {sCNT}, 0'); A(f's_mov_b32 {sBASE}, 0')
    nlater = 4 * (NC - 3)
    A(f's_waitcnt vmcnt({nlater+2})')
    A('s_barrier')
    if o.stamp:
        A('s_memtime s[44:45]'); A('s_waitcnt lgkmcnt(0)')
    for s in range(o.PF):
        A(f'ds_read_b128 {ar(Freg(s),4)}, v3 offset:{8192+s*1024}')
    A(f's_waitcnt lgkmcnt({o.PF-1})')
    M, sc, ve = step(o, False, do_qk=True, do_pv=False)
    for g in range(8 - o.PF, 8):
        sc[g][3] = [f's_waitcnt lgkmcnt({max(0, 6-g)})']
    for g in range(8, len(M)):
        sc[g][3] = []
    sc[15 - o.PF][3] = [f's_waitcnt vmcnt({nlater})', 's_barrier']
    sc[len(M) - 1][3] = [f's_waitcnt lgkmcnt({o.PF-1})']
    first = flatten(M, sc, ve)
    P += first
    A('s_branch LloopB')
    stA = flatten(*step(o, False))
    stB = flatten(*step(o, True))
    body = ['.p2align 6', 'LloopA:'] + stA + ['LloopB:'] + stB + ['s_cbranch_scc1 LloopA']
    M, sc, ve = step(o, False, do_qk=False, do_pv=True)
    for g in range(0, 7):
        sc[g][3] = []
    for g in range(16 - o.PF, 16):
        sc[g][3] = [f's_waitcnt lgkmcnt({max(0, 14-g)})']
    if mf: sc[16][3] = []
    T = flatten(M, sc, ve)
    A2 = T.append
    if o.stamp:
        A2('s_memtime s[46:47]')
    A2('s_nop 7')
    def lsum(B):
        if not mf:
            for qb in range(4):
                B(f'v_add_f32 v{L0+4*qb}, v{L0+4*qb}, v{L0+4*qb+1}')
            for sw in ('v_permlane32_swap_b32', 'v_permlane16_swap_b32'):
                for qb in range(4):
                    B(f'v_mov_b32 v{L0+4*qb+1}, v{L0+4*qb}')
                B('s_nop 1')
                for qb in range(4):
                    B(f'{sw} v{L0+4*qb}, v{L0+4*qb+1}')
                for qb in range(4):
                    B(f'v_add_f32 v{L0+4*qb}, v{L0+4*qb}, v{L0+4*qb+1}')
    lsum(A2)
    A2(f's_mov_b32 s30, {f2u(2.0**60):#x}'); A2(f's_mov_b32 s31, {f2u(2.0**-60):#x}')
    A2('s_mov_b64 s[34:35], exec')
    for qb in range(4):
        A2(f'v_cmp_ge_f32 vcc, s30, v{L0+4*qb}')
        A2('s_and_b64 s[34:35], s[34:35], vcc')
        A2(f'v_cmp_le_f32 vcc, s31, v{L0+4*qb}')
        A2('s_and_b64 s[34:35], s[34:35], vcc')
    A2('s_cmp_eq_u64 s[34:35], exec')
    if o.force_slow:
        A2('s_branch Lslow')
    else:
        A2('s_cbranch_scc0 Lslow')
    E = ['Lfinish:']; B = E.append
    for qb in range(4):
        B(f'v_rcp_f32 v{L0+4*qb}, v{L0+4*qb}')
    B('s_nop 0')
    for qb in range(4):
        for x in range(4):
            ob = Oreg(qb, 2 * x)
            for p in range(4):
                B(f'v_pk_mul_f32 {vr(ob+2*p,2)}, {vr(ob+2*p,2)}, {vr(L0+4*qb,2)} op_sel_hi:[1,0]')
            t = S0 + 4 * ((qb * 4 + x) % 16)
            for p in range(4):
                B(f'v_cvt_pk_bf16_f32 v{t+p}, v{ob+2*p}, v{ob+2*p+1}')
            B(f'buffer_store_dwordx4 {vr(t,4)}, v1, s[12:15], {so[qb]} offen offset:{x*64}')
    if o.stamp:
        B('s_waitcnt vmcnt(0)')
        B('s_memtime s[50:51]'); B('s_memrealtime s[52:53]'); B('s_waitcnt lgkmcnt(0)')
        B('s_sub_u32 s44, s44, s40'); B('s_sub_u32 s46, s46, s40'); B('s_sub_u32 s50, s50, s40')
        B('v_mov_b32 v8, s44'); B('v_mov_b32 v9, s46'); B('v_mov_b32 v10, s50'); B('v_mov_b32 v11, s42')
        B('v_mov_b32 v12, s52'); B('v_mov_b32 v13, 0'); B('v_mov_b32 v14, 0'); B('v_mov_b32 v15, 0')
        B(f's_lshl_b32 s30, s2, 2'); B(f's_add_u32 s30, s30, {sWAVE}'); B('s_lshl_b32 s30, s30, 5')
        B('s_add_u32 s30, s30, 0x800000'); B('v_mov_b32 v6, s30')
        B('global_store_dwordx4 v6, v[8:11], s[48:49]')
        B('global_store_dwordx4 v6, v[12:15], s[48:49] offset:16')
    B('Lend:')
    B('s_endpgm')
    W = ['Lslow:']; C = W.append
    mreg = T0; areg = T0 + 4; treg = T0 + 8
    C('s_waitcnt vmcnt(0) lgkmcnt(0)')
    C(f's_mov_b32 s10, {sNREC}')
    for r in range(O0, L0 + 16):
        C(f'v_mov_b32 v{r}, 0')
    for qb in range(4):
        C(f'v_mov_b32 v{mreg+qb}, 0xff800000')
    C(f's_mov_b32 {sCNT}, 0')
    Wl = ['Lslow_loop:']; C = Wl.append
    C(f's_lshl_b32 s30, {sCNT}, 14'); C('s_add_u32 s31, s30, 0x3000'); C('s_add_u32 s30, s30, 0x2000')
    for f in range(8):
        C(f'buffer_load_dwordx4 {ar(Freg(f),4)}, v2, s[8:11], {"s30" if f<4 else "s31"} offen offset:{(f%4)*1024}')
    C(f's_add_u32 s30, {sCNT}, 2'); C('s_and_b32 s30, s30, 63'); C('s_lshl_b32 s30, s30, 14'); C('s_add_u32 s31, s30, 0x1000')
    C('s_waitcnt vmcnt(0)')
    for f in range(8):
        for qb in range(4):
            C(qk_mfma(0, f, qb))
    C('s_nop 7'); C('s_nop 7')
    for f in range(8):
        C(f'buffer_load_dwordx4 {ar(Freg(f),4)}, v2, s[8:11], {"s30" if f<4 else "s31"} offen offset:{(f%4)*1024}')
    for qb in range(4):
        s = Sreg(0, qb)
        C(f'v_max3_f32 v{treg}, v{s}, v{s+1}, v{s+2}')
        C(f'v_max3_f32 v{treg}, v{treg}, v{s+3}, v{s+4}')
        C(f'v_max3_f32 v{treg}, v{treg}, v{s+5}, v{s+6}')
        C(f'v_max3_f32 v{treg}, v{treg}, v{s+7}, v{mreg+qb}')
        for sw in ('v_permlane32_swap_b32', 'v_permlane16_swap_b32'):
            C(f'v_mov_b32 v{treg+1}, v{treg}')
            C('s_nop 1')
            C(f'{sw} v{treg}, v{treg+1}')
            C(f'v_max_f32 v{treg}, v{treg}, v{treg+1}')
        C(f'v_sub_f32 v{areg}, v{mreg+qb}, v{treg}')
        C(f'v_mov_b32 v{mreg+qb}, v{treg}')
        C(f'v_exp_f32 v{areg}, v{areg}')
        for r in range(8):
            C(f'v_sub_f32 v{s+r}, v{s+r}, v{treg}')
        for r in range(8):
            C(f'v_exp_f32 v{s+r}, v{s+r}')
        for r in range(4):
            C(f'v_mul_f32 v{L0+4*qb+r}, v{L0+4*qb+r}, v{areg}')
        if not mf:
            for r in range(8):
                C(f'v_add_f32 v{L0+4*qb}, v{L0+4*qb}, v{s+r}')
        for p in range(4):
            C(f'v_cvt_pk_bf16_f32 v{s+p}, v{s+2*p}, v{s+2*p+1}')
        for r in range(32):
            C(f'v_mul_f32 v{Oreg(qb,0)+r}, v{Oreg(qb,0)+r}, v{areg}')
    C('s_waitcnt vmcnt(0)')
    C('s_nop 1')
    for f in range(8):
        for qb in range(4):
            C(pv_mfma(0, f, qb))
    if mf:
        for qb in range(4):
            C(sum_mfma(0, qb))
    C(f's_add_u32 {sCNT}, {sCNT}, 1'); C(f's_cmp_lt_u32 {sCNT}, 64')
    C('s_nop 7'); C('s_nop 7')
    C('s_cbranch_scc1 Lslow_loop')
    We = []
    lsum(We.append)
    We.append('s_branch Lfinish')
    errs = []
    errs += hz.check(P + stB + stA + stB + T + E, 'fast')
    errs += hz.check(T + W + Wl + Wl + We + E, 'slow')
    return P + body + T + E + W + Wl + We, errs

HDR = open('cdna_kernels/' + KN + '.s.ref').read().split('; Override launch')[0] if True else ''

def kd(name, vg, acc, sg):
    return ['.section .rodata,"a"', '.p2align 6', f'.amdhsa_kernel {name}',
            f'  .amdhsa_next_free_vgpr {vg}', f'  .amdhsa_next_free_sgpr {sg}', f'  .amdhsa_accum_offset {acc}',
            '  .amdhsa_group_segment_fixed_size 0', '  .amdhsa_kernarg_size 80', '  .amdhsa_user_sgpr_count 2',
            '  .amdhsa_user_sgpr_kernarg_segment_ptr 1', '  .amdhsa_system_sgpr_workgroup_id_x 1',
            '  .amdhsa_float_denorm_mode_32 3', '.end_amdhsa_kernel', '.text']

def generate(o):
    prep = gen_prep(o)
    main, errs = gen_main(o)
    errs += hz.check(prep, 'prep')
    L = [HDR.rstrip()]
    L.append('; @launch kernel=prep_kernel grid=(256,1,1) block=(256,1,1) lds=0')
    L.append(f'; @launch kernel=attn_kernel grid=(256,1,1) block=(256,1,1) lds={o.NC*16384}')
    L.append('.amdgcn_target "amdgcn-amd-amdhsa--gfx950"')
    L.append('.text')
    for nm, code in (('prep_kernel', prep), ('attn_kernel', main)):
        L += [f'.globl {nm}', '.p2align 8', f'.type {nm},@function']
        L += [(l if l.endswith(':') or l.startswith('.') else '    ' + l) for l in code]
    L += kd('prep_kernel', 96, 96, 48)
    L += kd('attn_kernel', 352, 256, 64)
    return '\n'.join(L) + '\n', errs

if __name__ == '__main__':
    kw = {}
    out = sys.argv[1]
    for a in sys.argv[2:]:
        k, v = a.split('=')
        kw[k] = int(v) if v.lstrip('-').isdigit() else v
    s, errs = generate(Opt(**kw))
    for e in errs: print('HAZARD', e)
    open(out, 'w').write(s)
    print('wrote', out, len(s), 'bytes;', len(errs), 'hazards')
```

```python
import sys, math, struct
import hz

KN = 'standalone__kv_cache_quant_int4_int2_kv_with_per_channel_or_per_token_scales__prompt'

def f2u(x):
    return struct.unpack('<I', struct.pack('<f', x))[0]

CSCALE = (128 ** -0.5) * math.log2(math.e)

class Opt:
    def __init__(self, **kw):
        self.summode = 'mfma'
        self.PF = 3
        self.NC = 8
        self.G0 = 5
        self.stamp = 0
        self.force_slow = 0
        self.abl = ''
        self.__dict__.update(kw)

def vr(b, n=1):
    return f'v{b}' if n == 1 else f'v[{b}:{b+n-1}]'
def ar(b, n=1):
    return f'a{b}' if n == 1 else f'a[{b}:{b+n-1}]'

def gen_prep(o):
    L = []; A = L.append
    A('prep_kernel:')
    A('s_cmp_ge_u32 s2, 256')
    A('s_cbranch_scc1 Lprep_end')
    if o.stamp:
        A('s_memrealtime s[46:47]')
    A('s_load_dwordx4 s[4:7], s[0:1], 8')
    A('s_load_dwordx4 s[8:11], s[0:1], 24')
    A('s_load_dwordx4 s[12:15], s[0:1], 40')
    A('s_load_dwordx2 s[16:17], s[0:1], 72')
    A('v_lshrrev_b32 v1, 6, v0')
    A('v_and_b32 v2, 63, v0')
    A('v_readfirstlane_b32 s3, v1')
    A('s_lshr_b32 s18, s2, 6')
    A('s_and_b32 s19, s2, 63')
    A('s_mov_b32 s22, 0x400000')
    A('s_mov_b32 s23, 0x20000')
    A('s_mov_b32 s26, 0x4000')
    A('s_mov_b32 s27, 0x20000')
    A('s_mov_b32 s30, 0x4000')
    A('s_mov_b32 s31, 0x20000')
    A('s_mov_b32 s38, 0x400000')
    A('s_mov_b32 s39, 0x20000')
    A('s_lshl_b32 s40, s2, 14')
    A('s_waitcnt lgkmcnt(0)')
    A('s_mov_b32 s36, s16')
    A('s_mov_b32 s37, s17')
    A('s_cmp_ge_u32 s3, 2')
    A('s_cbranch_scc1 Lprep_k')
    A('s_mov_b32 s20, s6'); A('s_mov_b32 s21, s7')
    A('s_mov_b32 s24, s12'); A('s_mov_b32 s25, s13')
    A('s_mov_b32 s28, s14'); A('s_mov_b32 s29, s15')
    A('v_lshrrev_b32 v3, 5, v0')
    A('v_and_b32 v4, 31, v0')
    A('v_lshlrev_b32 v5, 11, v3')
    A('v_lshl_add_u32 v5, v4, 4, v5')
    A('s_add_u32 s41, s40, 8192')
    for e in range(8):
        A(f'buffer_load_dwordx4 {vr(16+4*e,4)}, v5, s[20:23], {"s40" if e<4 else "s41"} offen offset:{(e%4)*512}')
    A('v_lshlrev_b32 v6, 3, v3')
    A('s_lshl_b32 s42, s2, 6')
    A('buffer_load_dwordx2 v[8:9], v6, s[24:27], s42 offen')
    A('buffer_load_dwordx2 v[10:11], v6, s[24:27], s42 offen offset:32')
    A('buffer_load_dwordx2 v[12:13], v6, s[28:31], s42 offen')
    A('buffer_load_dwordx2 v[14:15], v6, s[28:31], s42 offen offset:32')
    A('v_lshrrev_b32 v6, 3, v4'); A('v_lshlrev_b32 v6, 11, v6')
    A('v_and_b32 v7, 1, v4'); A('v_lshl_add_u32 v6, v7, 10, v6')
    A('v_bfe_u32 v7, v4, 1, 2'); A('v_lshl_add_u32 v6, v7, 6, v6')
    A('v_lshl_add_u32 v6, v3, 8, v6')
    A('s_add_u32 s43, s19, 2'); A('s_and_b32 s43, s43, 63'); A('s_lshl_b32 s43, s43, 14')
    A('s_lshl_b32 s44, s18, 20'); A('s_add_u32 s43, s43, s44')
    A('s_waitcnt vmcnt(0)')
    for e in range(8):
        src = 8 + e // 2
        if e % 2 == 0:
            A(f'v_lshlrev_b32 v{48+e}, 16, v{src}'); A(f'v_lshlrev_b32 v{56+e}, 16, v{src+4}')
        else:
            A(f'v_and_b32 v{48+e}, 0xffff0000, v{src}'); A(f'v_and_b32 v{56+e}, 0xffff0000, v{src+4}')
    for e in range(8):
        for r in range(4):
            A(f'v_cvt_f32_i32 v{16+4*e+r}, v{16+4*e+r}')
        for r in range(4):
            A(f'v_sub_f32 v{16+4*e+r}, v{16+4*e+r}, v{56+e}')
        for r in range(4):
            A(f'v_mul_f32 v{16+4*e+r}, v{16+4*e+r}, v{48+e}')
    for r in range(4):
        for p in range(4):
            A(f'v_cvt_pk_bf16_f32 v{64+4*r+p}, v{16+8*p+r}, v{20+8*p+r}')
        A(f'buffer_store_dwordx4 {vr(64+4*r,4)}, v6, s[36:39], s43 offen offset:{16*r}')
    if o.stamp:
        A('s_waitcnt vmcnt(0)')
        A('s_memrealtime s[44:45]'); A('s_waitcnt lgkmcnt(0)')
        A('v_mov_b32 v8, s46'); A('v_mov_b32 v9, s44')
        A('s_lshl_b32 s30, s2, 3'); A('s_add_u32 s30, s30, 0x900000'); A('v_mov_b32 v6, s30')
        A('global_store_dwordx2 v6, v[8:9], s[16:17]')
    A('s_endpgm')
    A('Lprep_k:')
    A('s_mov_b32 s20, s4'); A('s_mov_b32 s21, s5')
    A('s_mov_b32 s24, s8'); A('s_mov_b32 s25, s9')
    A('s_mov_b32 s28, s10'); A('s_mov_b32 s29, s11')
    A('s_sub_u32 s3, s3, 2')
    A('v_and_b32 v3, 15, v2')
    A('v_lshrrev_b32 v4, 4, v2')
    A('v_lshlrev_b32 v5, 9, v3')
    A('v_lshl_add_u32 v5, v4, 5, v5')
    A('s_lshl_b32 s41, s3, 13'); A('s_add_u32 s41, s41, s40')
    for ds in range(4):
        for u in range(2):
            A(f'buffer_load_dwordx4 {vr(16+8*ds+4*u,4)}, v5, s[20:23], s41 offen offset:{ds*128+16*u}')
    A('v_lshlrev_b32 v6, 4, v4')
    A('s_lshr_b32 s42, s2, 2'); A('s_lshl_b32 s42, s42, 8')
    for ds in range(4):
        A(f'buffer_load_dwordx4 {vr(48+4*ds,4)}, v6, s[24:27], s42 offen offset:{ds*64}')
        A(f'buffer_load_dwordx4 {vr(64+4*ds,4)}, v6, s[28:31], s42 offen offset:{ds*64}')
    A('v_lshlrev_b32 v6, 4, v2')
    A('s_lshl_b32 s43, s3, 12'); A('s_add_u32 s43, s43, s40'); A('s_add_u32 s43, s43, 8192')
    A(f's_mov_b32 s44, {f2u(CSCALE):#x}')
    A('s_waitcnt vmcnt(0)')
    for ds in range(4):
        for e in range(8):
            x = 16 + 8 * ds + e
            src = 4 * ds + e // 2
            if e % 2 == 0:
                A(f'v_lshlrev_b32 v8, 16, v{48+src}'); A(f'v_lshlrev_b32 v9, 16, v{64+src}')
            else:
                A(f'v_and_b32 v8, 0xffff0000, v{48+src}'); A(f'v_and_b32 v9, 0xffff0000, v{64+src}')
            A(f'v_cvt_f32_i32 v{x}, v{x}')
            A('v_mul_f32 v8, s44, v8')
            A(f'v_sub_f32 v{x}, v{x}, v9')
            A(f'v_mul_f32 v{x}, v{x}, v8')
        for p in range(4):
            A(f'v_cvt_pk_bf16_f32 v{80+4*ds+p}, v{16+8*ds+2*p}, v{17+8*ds+2*p}')
        A(f'buffer_store_dwordx4 {vr(80+4*ds,4)}, v6, s[36:39], s43 offen offset:{ds*1024}')
    A('Lprep_end:')
    A('s_endpgm')
    return L

S0 = 16; O0 = 80; L0 = 208; ONES = 224; T0 = 228
Q0 = 0; F0 = 64
MF = 'v_mfma_f32_16x16x32_bf16'
sWAVE, sCNT, sOFF, sBASE, sTMP = 's16', 's17', 's18', 's19', 's20'
s4K, s8K, s12K, s16K, s32K, sLMASK, sGMASK, sNREC = 's21', 's22', 's23', 's24', 's25', 's26', 's27', 's28'

def Sreg(par, qb): return S0 + 32 * par + 8 * qb
def Oreg(qb, db): return O0 + (qb * 8 + db) * 4
def Freg(s): return F0 + 4 * (s % 8)

def qk_mfma(par, f, qb):
    kb, ds = f // 4, f % 4
    d = vr(Sreg(par, qb) + 4 * kb, 4)
    return f'{MF} {d}, {ar(Freg(f),4)}, {ar(Q0+(qb*4+ds)*4,4)}, {"0" if ds == 0 else d}'
def pv_mfma(par, db, qb):
    d = vr(Oreg(qb, db), 4)
    return f'{MF} {d}, {ar(Freg(db),4)}, {vr(Sreg(par,qb),4)}, {d}'
def sum_mfma(par, qb):
    d = vr(L0 + 4 * qb, 4)
    return f'{MF} {d}, {vr(ONES,4)}, {vr(Sreg(par,qb),4)}, {d}'

def step(o, isB, do_qk=True, do_pv=True):
    pn = 1 if isB else 0
    pc = 1 - pn
    mf = o.summode == 'mfma'
    ng = 17 if mf else 16
    M = [[None] * 4 for _ in range(ng)]
    sc = [[[] for _ in range(4)] for _ in range(ng)]
    ve = [[[] for _ in range(4)] for _ in range(ng)]
    for g in range(8):
        for q in range(4):
            M[g][q] = qk_mfma(pn, g, q) if do_qk else None
            M[8 + g][q] = pv_mfma(pc, g, q) if do_pv else None
    if mf:
        for q in range(4):
            M[16][q] = sum_mfma(pc, q) if do_pv else None
    koff = 24576 if isB else 8192
    voff = 0 if isB else 16384
    koff_next = 8192 if isB else 24576
    for g in range(16):
        s = g + o.PF
        if s < 8: off, need = koff + s * 1024, do_qk
        elif s < 16: off, need = voff + (s - 8) * 1024, do_pv
        else: off, need = koff_next + (s - 16) * 1024, do_qk
        if need and 'd' not in o.abl:
            ve[g][1].append(f'ds_read_b128 {ar(Freg(s),4)}, v3 offset:{off}')
        gw = g if not (mf and g == 15) else 16
        sc[gw][3].append(f's_waitcnt lgkmcnt({o.PF-1})')
    for pr in range(16):
        kb, qb, hh = pr // 8, (pr % 8) // 2, pr % 2
        ge = o.G0 + pr
        par, need = (pn, do_qk) if ge < 16 else (pc, do_pv)
        r = Sreg(par, qb) + 4 * kb + 2 * hh
        if need:
            if 'e' not in o.abl:
                ve[ge % 16][0].append(f'v_exp_f32 v{r}, v{r}')
                ve[ge % 16][2].append(f'v_exp_f32 v{r+1}, v{r+1}')
            if not mf:
                ve[ge % 16][3].append(f'v_add_f32 v{L0+4*qb}, v{L0+4*qb}, v{r}')
                ve[ge % 16][3].append(f'v_add_f32 v{L0+4*qb+1}, v{L0+4*qb+1}, v{r+1}')
        gc = ge + 1
        par, need = (pn, do_qk) if gc < 16 else (pc, do_pv)
        r = Sreg(par, qb) + 4 * kb + 2 * hh
        if need and 'c' not in o.abl:
            ve[gc % 16][1].append(f'v_cvt_pk_bf16_f32 v{Sreg(par,qb)+2*kb+hh}, v{r}, v{r+1}')
    full = do_qk and do_pv
    if full:
        sc[8][0].append(f's_add_u32 {sTMP}, m0, {s16K}')
        if o.NC == 8:
            sc[8][1].append(f's_and_b32 m0, {sTMP}, {sLMASK}')
        else:
            sc[8][1].append(f's_cmp_ge_u32 {sTMP}, {sLMASK}')
            sc[8][2].append(f's_cselect_b32 s29, {sLMASK}, 0')
            sc[9][0].append(f's_sub_u32 m0, {sTMP}, s29')
        sc[9][1].append(f's_add_u32 {sOFF}, {sOFF}, {s16K}')
        sc[9][2].append(f's_and_b32 {sOFF}, {sOFF}, {sGMASK}')
        if 'm' not in o.abl:
            pos = [(10, 3), (12, 3), (14, 3), (16, 1)] if mf else [(10, 3), (11, 3), (13, 3), (14, 3)]
            for k, (g, q) in enumerate(pos):
                ve[g][q].insert(0, f'buffer_load_dwordx4 v4, s[8:11], {sOFF} offen offset:{k*1024} lds')
        if isB:
            gb = 7 - o.PF
            sc[0][0].append(f's_add_u32 {sBASE}, {sBASE}, {s32K}')
            if o.NC == 8:
                sc[0][1].append(f's_and_b32 {sBASE}, {sBASE}, {sLMASK}')
            else:
                sc[0][1].append(f's_cmp_ge_u32 {sBASE}, {sLMASK}')
                sc[0][2].append(f's_cselect_b32 {sBASE}, 0, {sBASE}')
            ve[gb][3].append(f'v_add_u32 v3, {sBASE}, v2')
            sc[gb][2].append(f's_waitcnt vmcnt({4*(o.NC-5)})')
            if 'b' not in o.abl:
                sc[gb + 1][0].append('s_barrier')
            sc[ng - 1][0].append(f's_add_u32 {sCNT}, {sCNT}, 1')
            sc[ng - 1][2].append(f's_cmp_lt_u32 {sCNT}, 32')
        else:
            sc[0][0].append(f's_cmp_lt_u32 {sCNT}, {(68-o.NC)//2}')
            sc[0][1].append(f's_cselect_b32 s10, {sNREC}, 0')
    return M, sc, ve

def flatten(M, sc, ve):
    L = []
    for g in range(len(M)):
        for q in range(4):
            if M[g][q]: L.append(M[g][q])
            L += sc[g][q]
            L += ve[g][q]
    return L

def gen_main(o):
    mf = o.summode == 'mfma'
    NC = o.NC
    P = []; A = P.append
    A('attn_kernel:')
    A('s_cmp_ge_u32 s2, 256')
    A('s_cbranch_scc1 Lend')
    if o.stamp:
        A('s_memtime s[40:41]'); A('s_memrealtime s[42:43]')
    A('s_load_dwordx2 s[4:5], s[0:1], 0')
    A('s_load_dwordx2 s[8:9], s[0:1], 72')
    A('s_load_dwordx2 s[12:13], s[0:1], 56')
    A('v_lshrrev_b32 v5, 6, v0')
    A('v_and_b32 v2, 63, v0')
    A(f'v_readfirstlane_b32 {sWAVE}, v5')
    A('s_and_b32 s3, s2, 7'); A('s_lshl_b32 s3, s3, 5'); A('s_lshr_b32 s29, s2, 3'); A('s_add_u32 s3, s3, s29')
    A('v_and_b32 v6, 15, v2'); A('v_lshrrev_b32 v7, 4, v2')
    A('v_lshlrev_b32 v1, 8, v6'); A('v_lshl_add_u32 v1, v7, 4, v1'); A('v_lshl_add_u32 v1, v5, 14, v1')
    A('v_lshlrev_b32 v2, 4, v2')
    A('v_lshl_add_u32 v4, v5, 12, v2')
    A('v_mov_b32 v3, v2')
    A(f's_movk_i32 {s4K}, 0x1000'); A(f's_movk_i32 {s8K}, 0x2000'); A(f's_movk_i32 {s12K}, 0x3000'); A(f's_movk_i32 {s16K}, 0x4000')
    A(f's_mov_b32 {s32K}, 0x8000')
    A(f's_mov_b32 {sLMASK}, {0x1ffff if NC == 8 else NC*16384:#x}')
    A(f's_mov_b32 {sGMASK}, 0xfffff'); A(f's_mov_b32 {sNREC}, 0x100000')
    A('s_mov_b32 s6, 0x10000'); A('s_mov_b32 s7, 0x20000')
    A('s_mov_b32 s10, 0x100000'); A('s_mov_b32 s11, 0x20000')
    A('s_mov_b32 s14, 0x10000'); A('s_mov_b32 s15, 0x20000')
    A('s_lshl_b32 s30, s3, 16')
    A('s_lshr_b32 s31, s3, 6'); A('s_lshl_b32 s31, s31, 20')
    A(f's_lshl_b32 s32, {sWAVE}, 11'); A('s_add_u32 s32, s32, 0x2000')
    A('s_waitcnt lgkmcnt(0)')
    if o.stamp:
        A('s_mov_b32 s48, s8'); A('s_mov_b32 s49, s9')
    A('s_add_u32 s8, s8, s31'); A('s_addc_u32 s9, s9, 0')
    A('s_add_u32 s4, s4, s30'); A('s_addc_u32 s5, s5, 0')
    A('s_add_u32 s12, s12, s30'); A('s_addc_u32 s13, s13, 0')
    A('s_mov_b32 m0, s32')
    A('s_add_u32 s33, s32, 0x4000')
    A('buffer_load_dwordx4 v2, s[8:11], s32 offen lds')
    A('buffer_load_dwordx4 v2, s[8:11], s32 offen offset:1024 lds')
    so = ['0', s4K, s8K, s12K]
    for qb in range(4):
        for ds in range(4):
            A(f'buffer_load_dwordx4 {ar(Q0+(qb*4+ds)*4,4)}, v1, s[4:7], {so[qb]} offen offset:{ds*64}')
    A('s_mov_b32 m0, s33')
    A(f's_lshl_b32 s34, {sWAVE}, 12')
    A('buffer_load_dwordx4 v2, s[8:11], s33 offen lds')
    A('buffer_load_dwordx4 v2, s[8:11], s33 offen offset:1024 lds')
    for c in range(2, NC - 1):
        A(f's_add_u32 m0, s34, {c*16384}')
        A(f's_mov_b32 {sOFF}, {c*16384}')
        for k in range(4):
            A(f'buffer_load_dwordx4 v4, s[8:11], {sOFF} offen offset:{k*1024} lds')
    for r in range(O0, L0 + 16):
        A(f'v_mov_b32 v{r}, 0')
    if mf:
        A('v_and_b32 v6, 3, v0')
        A('v_mov_b32 v7, 0x3f803f80')
        A('v_cmp_eq_u32 vcc, 0, v6')
        A('s_nop 1')
        for r in range(4):
            A(f'v_cndmask_b32 v{ONES+r}, 0, v7, vcc')
    A(f's_mov_b32 {sCNT}, 0'); A(f's_mov_b32 {sBASE}, 0')
    nlater = 4 * (NC - 3)
    A(f's_waitcnt vmcnt({nlater+2})')
    A('s_barrier')
    if o.stamp:
        A('s_memtime s[44:45]'); A('s_waitcnt lgkmcnt(0)')
    for s in range(o.PF):
        A(f'ds_read_b128 {ar(Freg(s),4)}, v3 offset:{8192+s*1024}')
    A(f's_waitcnt lgkmcnt({o.PF-1})')
    M, sc, ve = step(o, False, do_qk=True, do_pv=False)
    for g in range(8 - o.PF, 8):
        sc[g][3] = [f's_waitcnt lgkmcnt({max(0, 6-g)})']
    for g in range(8, len(M)):
        sc[g][3] = []
    sc[15 - o.PF][3] = [f's_waitcnt vmcnt({nlater})', 's_barrier']
    sc[len(M) - 1][3] = [f's_waitcnt lgkmcnt({o.PF-1})']
    first = flatten(M, sc, ve)
    P += first
    A('s_branch LloopB')
    stA = flatten(*step(o, False))
    stB = flatten(*step(o, True))
    body = ['.p2align 6', 'LloopA:'] + stA + ['LloopB:'] + stB + ['s_cbranch_scc1 LloopA']
    M, sc, ve = step(o, False, do_qk=False, do_pv=True)
    for g in range(0, 7):
        sc[g][3] = []
    for g in range(16 - o.PF, 16):
        sc[g][3] = [f's_waitcnt lgkmcnt({max(0, 14-g)})']
    if mf: sc[16][3] = []
    T = flatten(M, sc, ve)
    A2 = T.append
    if o.stamp:
        A2('s_memtime s[46:47]')
    A2('s_nop 7')
    def lsum(B):
        if not mf:
            for qb in range(4):
                B(f'v_add_f32 v{L0+4*qb}, v{L0+4*qb}, v{L0+4*qb+1}')
            for sw in ('v_permlane32_swap_b32', 'v_permlane16_swap_b32'):
                for qb in range(4):
                    B(f'v_mov_b32 v{L0+4*qb+1}, v{L0+4*qb}')
                B('s_nop 1')
                for qb in range(4):
                    B(f'{sw} v{L0+4*qb}, v{L0+4*qb+1}')
                for qb in range(4):
                    B(f'v_add_f32 v{L0+4*qb}, v{L0+4*qb}, v{L0+4*qb+1}')
    lsum(A2)
    A2(f's_mov_b32 s30, {f2u(2.0**60):#x}'); A2(f's_mov_b32 s31, {f2u(2.0**-60):#x}')
    A2('s_mov_b64 s[34:35], exec')
    for qb in range(4):
        A2(f'v_cmp_ge_f32 vcc, s30, v{L0+4*qb}')
        A2('s_and_b64 s[34:35], s[34:35], vcc')
        A2(f'v_cmp_le_f32 vcc, s31, v{L0+4*qb}')
        A2('s_and_b64 s[34:35], s[34:35], vcc')
    A2('s_cmp_eq_u64 s[34:35], exec')
    if o.force_slow:
        A2('s_branch Lslow')
    else:
        A2('s_cbranch_scc0 Lslow')
    E = ['Lfinish:']; B = E.append
    for qb in range(4):
        B(f'v_rcp_f32 v{L0+4*qb}, v{L0+4*qb}')
    B('s_nop 0')
    for qb in range(4):
        for x in range(4):
            ob = Oreg(qb, 2 * x)
            for p in range(4):
                B(f'v_pk_mul_f32 {vr(ob+2*p,2)}, {vr(ob+2*p,2)}, {vr(L0+4*qb,2)} op_sel_hi:[1,0]')
            t = S0 + 4 * ((qb * 4 + x) % 16)
            for p in range(4):
                B(f'v_cvt_pk_bf16_f32 v{t+p}, v{ob+2*p}, v{ob+2*p+1}')
            B(f'buffer_store_dwordx4 {vr(t,4)}, v1, s[12:15], {so[qb]} offen offset:{x*64}')
    if o.stamp:
        B('s_waitcnt vmcnt(0)')
        B('s_memtime s[50:51]'); B('s_memrealtime s[52:53]'); B('s_waitcnt lgkmcnt(0)')
        B('s_sub_u32 s44, s44, s40'); B('s_sub_u32 s46, s46, s40'); B('s_sub_u32 s50, s50, s40')
        B('v_mov_b32 v8, s44'); B('v_mov_b32 v9, s46'); B('v_mov_b32 v10, s50'); B('v_mov_b32 v11, s42')
        B('v_mov_b32 v12, s52'); B('v_mov_b32 v13, 0'); B('v_mov_b32 v14, 0'); B('v_mov_b32 v15, 0')
        B(f's_lshl_b32 s30, s2, 2'); B(f's_add_u32 s30, s30, {sWAVE}'); B('s_lshl_b32 s30, s30, 5')
        B('s_add_u32 s30, s30, 0x800000'); B('v_mov_b32 v6, s30')
        B('s_lshl_b32 s31, s2, 3'); B('s_add_u32 s31, s31, 0x900000'); B('v_mov_b32 v7, s31')
        B('global_load_dwordx2 v[14:15], v7, s[48:49]')
        B('s_waitcnt vmcnt(0)')
        B('v_sub_u32 v13, v11, v14'); B('v_sub_u32 v14, v15, v14'); B('v_sub_u32 v15, v12, v11')
        B('global_store_dwordx4 v6, v[8:11], s[48:49]')
        B('global_store_dwordx4 v6, v[12:15], s[48:49] offset:16')
        B('s_load_dwordx2 s[54:55], s[0:1], 64'); B('s_waitcnt lgkmcnt(0)')
        B('s_and_b32 s30, s2, 127'); B(f's_add_u32 s30, s30, {sWAVE}'); B('s_cmp_eq_u32 s30, 0'); B('s_cbranch_scc0 Lend')
        B('s_lshr_b32 s30, s2, 2'); B('v_mov_b32 v6, s30')
        B('global_store_dwordx4 v6, v[8:11], s[54:55]')
        B('global_store_dwordx4 v6, v[12:15], s[54:55] offset:16')
    B('Lend:')
    B('s_endpgm')
    W = ['Lslow:']; C = W.append
    mreg = T0; areg = T0 + 4; treg = T0 + 8
    C('s_waitcnt vmcnt(0) lgkmcnt(0)')
    C(f's_mov_b32 s10, {sNREC}')
    for r in range(O0, L0 + 16):
        C(f'v_mov_b32 v{r}, 0')
    for qb in range(4):
        C(f'v_mov_b32 v{mreg+qb}, 0xff800000')
    C(f's_mov_b32 {sCNT}, 0')
    Wl = ['Lslow_loop:']; C = Wl.append
    C(f's_lshl_b32 s30, {sCNT}, 14'); C('s_add_u32 s31, s30, 0x3000'); C('s_add_u32 s30, s30, 0x2000')
    for f in range(8):
        C(f'buffer_load_dwordx4 {ar(Freg(f),4)}, v2, s[8:11], {"s30" if f<4 else "s31"} offen offset:{(f%4)*1024}')
    C(f's_add_u32 s30, {sCNT}, 2'); C('s_and_b32 s30, s30, 63'); C('s_lshl_b32 s30, s30, 14'); C('s_add_u32 s31, s30, 0x1000')
    C('s_waitcnt vmcnt(0)')
    for f in range(8):
        for qb in range(4):
            C(qk_mfma(0, f, qb))
    C('s_nop 7'); C('s_nop 7')
    for f in range(8):
        C(f'buffer_load_dwordx4 {ar(Freg(f),4)}, v2, s[8:11], {"s30" if f<4 else "s31"} offen offset:{(f%4)*1024}')
    for qb in range(4):
        s = Sreg(0, qb)
        C(f'v_max3_f32 v{treg}, v{s}, v{s+1}, v{s+2}')
        C(f'v_max3_f32 v{treg}, v{treg}, v{s+3}, v{s+4}')
        C(f'v_max3_f32 v{treg}, v{treg}, v{s+5}, v{s+6}')
        C(f'v_max3_f32 v{treg}, v{treg}, v{s+7}, v{mreg+qb}')
        for sw in ('v_permlane32_swap_b32', 'v_permlane16_swap_b32'):
            C(f'v_mov_b32 v{treg+1}, v{treg}')
            C('s_nop 1')
            C(f'{sw} v{treg}, v{treg+1}')
            C(f'v_max_f32 v{treg}, v{treg}, v{treg+1}')
        C(f'v_sub_f32 v{areg}, v{mreg+qb}, v{treg}')
        C(f'v_mov_b32 v{mreg+qb}, v{treg}')
        C(f'v_exp_f32 v{areg}, v{areg}')
        for r in range(8):
            C(f'v_sub_f32 v{s+r}, v{s+r}, v{treg}')
        for r in range(8):
            C(f'v_exp_f32 v{s+r}, v{s+r}')
        for r in range(4):
            C(f'v_mul_f32 v{L0+4*qb+r}, v{L0+4*qb+r}, v{areg}')
        if not mf:
            for r in range(8):
                C(f'v_add_f32 v{L0+4*qb}, v{L0+4*qb}, v{s+r}')
        for p in range(4):
            C(f'v_cvt_pk_bf16_f32 v{s+p}, v{s+2*p}, v{s+2*p+1}')
        for r in range(32):
            C(f'v_mul_f32 v{Oreg(qb,0)+r}, v{Oreg(qb,0)+r}, v{areg}')
    C('s_waitcnt vmcnt(0)')
    C('s_nop 1')
    for f in range(8):
        for qb in range(4):
            C(pv_mfma(0, f, qb))
    if mf:
        for qb in range(4):
            C(sum_mfma(0, qb))
    C(f's_add_u32 {sCNT}, {sCNT}, 1'); C(f's_cmp_lt_u32 {sCNT}, 64')
    C('s_nop 7'); C('s_nop 7')
    C('s_cbranch_scc1 Lslow_loop')
    We = []
    lsum(We.append)
    We.append('s_branch Lfinish')
    errs = []
    errs += hz.check(P + stB + stA + stB + T + E, 'fast')
    errs += hz.check(T + W + Wl + Wl + We + E, 'slow')
    return P + body + T + E + W + Wl + We, errs

HDR = open('cdna_kernels/' + KN + '.s.ref').read().split('; Override launch')[0] if True else ''

def kd(name, vg, acc, sg):
    return ['.section .rodata,"a"', '.p2align 6', f'.amdhsa_kernel {name}',
            f'  .amdhsa_next_free_vgpr {vg}', f'  .amdhsa_next_free_sgpr {sg}', f'  .amdhsa_accum_offset {acc}',
            '  .amdhsa_group_segment_fixed_size 0', '  .amdhsa_kernarg_size 80', '  .amdhsa_user_sgpr_count 2',
            '  .amdhsa_user_sgpr_kernarg_segment_ptr 1', '  .amdhsa_system_sgpr_workgroup_id_x 1',
            '  .amdhsa_float_denorm_mode_32 3', '.end_amdhsa_kernel', '.text']

def generate(o):
    prep = gen_prep(o)
    main, errs = gen_main(o)
    errs += hz.check(prep, 'prep')
    L = [HDR.rstrip()]
    L.append('; @launch kernel=prep_kernel grid=(256,1,1) block=(256,1,1) lds=0')
    L.append(f'; @launch kernel=attn_kernel grid=(256,1,1) block=(256,1,1) lds={o.NC*16384}')
    L.append('.amdgcn_target "amdgcn-amd-amdhsa--gfx950"')
    L.append('.text')
    for nm, code in (('prep_kernel', prep), ('attn_kernel', main)):
        L += [f'.globl {nm}', '.p2align 8', f'.type {nm},@function']
        L += [(l if l.endswith(':') or l.startswith('.') else '    ' + l) for l in code]
    L += kd('prep_kernel', 96, 96, 48)
    L += kd('attn_kernel', 352, 256, 64)
    return '\n'.join(L) + '\n', errs

if __name__ == '__main__':
    kw = {}
    out = sys.argv[1]
    for a in sys.argv[2:]:
        k, v = a.split('=')
        kw[k] = int(v) if v.lstrip('-').isdigit() else v
    s, errs = generate(Opt(**kw))
    for e in errs: print('HAZARD', e)
    open(out, 'w').write(s)
    print('wrote', out, len(s), 'bytes;', len(errs), 'hazards')
```
